```python
import torch

def _softmax(x, axis=-1):
    return torch.softmax(x, dim=axis)

def _gelu(x):
    return torch.nn.functional.gelu(x, approximate='tanh')

def _silu(x):
    return torch.nn.functional.silu(x)

def _sigmoid(x):
    return torch.sigmoid(x)

def _layernorm(x, axis=-1, eps=1e-05):
    m = x.mean(dim=axis, keepdim=True)
    v = x.var(dim=axis, keepdim=True, unbiased=False)
    return (x - m) / torch.sqrt(v + eps)

def _scatter_add(tgt, idx, src, axis=0):
    return tgt.clone().index_add_(axis, idx, src)

def _segment_sum(src, seg, n):
    out = torch.zeros((n,) + src.shape[1:], dtype=src.dtype)
    return out.index_add_(0, seg, src)

def _pad(x, pw):
    flat = tuple((v for pair in reversed(pw) for v in pair))
    return torch.nn.functional.pad(x, flat)
kernel_name = 'standalone__video_video_swin__vision'

def setup_inputs():

    _w = lambda a: (lambda t: t.to(torch.bfloat16) if t.is_floating_point() else t)(torch.as_tensor(a))
    T = 4
    H = W = 384 // 7 * 7
    C, win = (96, 7)
    return {'x': _w((lambda *s: torch.randn(*s, dtype=torch.bfloat16) * 0.1)(1, T, H, W, C)), 'wqkv_t': _w((lambda *s: torch.randn(*s, dtype=torch.bfloat16) * 0.1)(C, 3 * C)), 'wo_t': _w((lambda *s: torch.randn(*s, dtype=torch.bfloat16) * 0.1)(C, C)), 'wqkv_s': _w((lambda *s: torch.randn(*s, dtype=torch.bfloat16) * 0.1)(C, 3 * C)), 'wo_s': _w((lambda *s: torch.randn(*s, dtype=torch.bfloat16) * 0.05)(C, C))}

def reference(x, wqkv_t, wo_t, wqkv_s, wo_s):
    B, T, H, W, C = x.shape
    win = 7
    scale = C ** (-0.5)
    h = _layernorm(x, axis=-1)
    ht = (lambda x, *d: x.permute(*d))(h, 0, 2, 3, 1, 4).reshape(B * H * W, T, C)
    qkv = ht @ wqkv_t
    q, k, v = (qkv[..., :C].clone(), qkv[..., C:2 * C].clone(), qkv[..., 2 * C:].clone())
    p = _softmax(torch.einsum('btc,bsc->bts', q, k) * scale, axis=-1)
    ot = torch.einsum('bts,bsc->btc', p, v) @ wo_t
    ot = (lambda x, *d: x.permute(*d))(ot.reshape(B, H, W, T, C), 0, 3, 1, 2, 4)
    x = x + ot
    h = _layernorm(x, axis=-1)
    nh, nw = (H // win, W // win)
    hs = h.reshape(B * T, nh, win, nw, win, C)
    hw = (lambda x, *d: x.permute(*d))(hs, 0, 1, 3, 2, 4, 5).reshape(B * T * nh * nw, win * win, C)
    qkv = hw @ wqkv_s
    q, k, v = (qkv[..., :C].clone(), qkv[..., C:2 * C].clone(), qkv[..., 2 * C:].clone())
    p = _softmax(torch.einsum('bqc,bkc->bqk', q, k) * scale, axis=-1)
    os = torch.einsum('bqk,bkc->bqc', p, v) @ wo_s
    os = (lambda x, *d: x.permute(*d))(os.reshape(B * T, nh, nw, win, win, C), 0, 1, 3, 2, 4, 5)
    os = os.reshape(B, T, H, W, C)
    return x + os
```

```python
import struct

class R:
    __slots__ = ("k", "i", "n")
    def __init__(self, k, i, n=1):
        self.k, self.i, self.n = k, i, n
    def __getitem__(self, x):
        if isinstance(x, slice):
            a = x.start or 0
            b = self.n if x.stop is None else x.stop
            assert 0 <= a < b <= self.n, (a, b, self.n)
            return R(self.k, self.i + a, b - a)
        assert 0 <= x < self.n, (x, self.n)
        return R(self.k, self.i + x, 1)
    def regs(self):
        return [(self.k, self.i + j) for j in range(self.n)]
    def __str__(self):
        if self.k in ("exec", "m0", "vcc"):
            return self.k
        return f"{self.k}{self.i}" if self.n == 1 else f"{self.k}[{self.i}:{self.i+self.n-1}]"
    __repr__ = __str__

def V(i, n=1): return R("v", i, n)
def S(i, n=1): return R("s", i, n)
EXEC = R("exec", 0, 1)
M0 = R("m0", 0, 1)
SCC = ("scc", 0)

class Neg:
    def __init__(self, r): self.r = r
    def __str__(self): return "-" + str(self.r)

def f2u(x): return struct.unpack("<I", struct.pack("<f", x))[0]
INLINE_F = {0.0: "0", 0.5: "0.5", -0.5: "-0.5", 1.0: "1.0", -1.0: "-1.0", 2.0: "2.0", -2.0: "-2.0", 4.0: "4.0", -4.0: "-4.0"}

def opstr(o):
    if isinstance(o, (R, Neg)): return str(o)
    if isinstance(o, float):
        return INLINE_F[o] if o in INLINE_F else hex(f2u(o))
    if isinstance(o, int):
        return str(o) if -16 <= o <= 64 else hex(o & 0xFFFFFFFF)
    return str(o)

def opregs(o):
    if isinstance(o, Neg): o = o.r
    return o.regs() if isinstance(o, R) else []

class I:
    __slots__ = ("op", "kind", "dst", "srcs", "mods", "reads", "writes", "mem", "text", "sub", "passes", "cread",
                 "group", "prio", "idx", "label", "n", "comment", "lat")
    def __init__(self, op, kind, dst=None, srcs=(), mods=None, reads=None, writes=None, mem=(), text=None):
        self.op, self.kind, self.dst, self.srcs, self.mods = op, kind, dst, list(srcs), mods or {}
        rd = []
        for s in self.srcs: rd += opregs(s)
        self.reads = rd if reads is None else reads
        self.writes = (opregs(dst) if dst is not None else []) if writes is None else writes
        self.mem = list(mem)
        self.text = text
        self.sub = None
        self.passes = 0
        self.cread = []
        self.group = None
        self.prio = 0
        self.label = None
        self.n = None
        self.comment = None
        self.lat = None
    def __str__(self): return self.text

VEC_KINDS = ("valu", "trans", "mfma", "dsr", "dsw", "vld", "vst", "dma", "swap")

class Prog:
    def __init__(self):
        self.items = []
    def add(self, i):
        if i.kind in VEC_KINDS and ("exec", 0) not in i.reads: i.reads = i.reads + [("exec", 0)]
        self.items.append(i); return i
    def sop(self, op, d, *srcs, scc=True, rscc=False):
        i = I(op, "salu", d, srcs, text=f"{op} " + ", ".join(opstr(x) for x in ([d] if d is not None else []) + list(srcs)))
        if scc: i.writes = i.writes + [SCC]
        if rscc: i.reads = i.reads + [SCC]
        return self.add(i)
    def s_mov(self, d, a): return self.sop("s_mov_b32", d, a, scc=False)
    def s_mov64(self, d, a): return self.sop("s_mov_b64", d, a, scc=False)
    def s_add(self, d, a, b): return self.sop("s_add_u32", d, a, b)
    def s_sub(self, d, a, b): return self.sop("s_sub_u32", d, a, b)
    def s_mul(self, d, a, b): return self.sop("s_mul_i32", d, a, b, scc=False)
    def s_mulhi(self, d, a, b): return self.sop("s_mul_hi_u32", d, a, b, scc=False)
    def s_lshl(self, d, a, b): return self.sop("s_lshl_b32", d, a, b)
    def s_lshr(self, d, a, b): return self.sop("s_lshr_b32", d, a, b)
    def s_and(self, d, a, b): return self.sop("s_and_b32", d, a, b)
    def s_xor(self, d, a, b): return self.sop("s_xor_b32", d, a, b)
    def s_min(self, d, a, b): return self.sop("s_min_u32", d, a, b)
    def s_cmp(self, cc, a, b): return self.sop(f"s_cmp_{cc}_u32", None, a, b)
    def s_csel(self, d, a, b): return self.sop("s_cselect_b32", d, a, b, scc=False, rscc=True)
    def s_load(self, d, base, off):
        nm = {1: "s_load_dword", 2: "s_load_dwordx2", 4: "s_load_dwordx4", 8: "s_load_dwordx8", 16: "s_load_dwordx16"}[d.n]
        return self.add(I(nm, "smem", d, [base], {"off": off}, text=f"{nm} {d}, {base}, {off}"))
    def setprio(self, p): return self.add(I("s_setprio", "fence0", mods={"p": p}, text=f"s_setprio {p}"))
    def barrier(self): return self.add(I("s_barrier", "barrier", text="s_barrier"))
    def wait(self, vm=None, lgkm=None):
        t = "s_waitcnt" + (f" vmcnt({vm})" if vm is not None else "") + (f" lgkmcnt({lgkm})" if lgkm is not None else "")
        return self.add(I("s_waitcnt", "wait", mods={"vm": vm, "lgkm": lgkm}, text=t))
    def wait_group(self, group, mem=()):
        i = I("s_waitcnt", "waitgrp", mods={"group": group}, mem=mem); return self.add(i)
    def nop(self, n):
        i = I("s_nop", "nop", mods={"n": n}, text=f"s_nop {n}"); return self.add(i)
    def label(self, name):
        i = I("label", "label", text=f"{name}:"); i.label = name; return self.add(i)
    def branch(self, cc, name):
        op = "s_branch" if cc is None else f"s_cbranch_{cc}"
        i = I(op, "branch", mods={"cc": cc}, text=f"{op} {name}", reads=[SCC] if cc else []); i.label = name; return self.add(i)
    def endpgm(self): return self.add(I("s_endpgm", "end", text="s_endpgm"))
    def raw(self, text): return self.add(I("raw", "raw", text=text))
    def memtime(self, d): return self.add(I("s_memtime", "smem", d, [], text=f"s_memtime {d}"))
    def memrealtime(self, d): return self.add(I("s_memrealtime", "smem", d, [], text=f"s_memrealtime {d}"))
    def vop(self, op, d, *srcs, kind="valu", rmw=False, dpp=None, suffix=""):
        t = f"{op}{'_dpp' if dpp else suffix} " + ", ".join(opstr(x) for x in [d] + list(srcs))
        mods = {}
        if dpp:
            ctrl, rm, bm = dpp
            t += f" {ctrl} row_mask:{hex(rm)} bank_mask:{hex(bm)}"
            mods["dpp"] = dpp
            if rm != 0xf or bm != 0xf: rmw = True
        i = I(op, kind, d, srcs, mods, text=t)
        if rmw: i.reads = i.reads + opregs(d)
        return self.add(i)
    def mov(self, d, a, dpp=None): return self.vop("v_mov_b32", d, a, dpp=dpp)
    def addu(self, d, a, b): return self.vop("v_add_u32", d, a, b)
    def subu(self, d, a, b): return self.vop("v_sub_u32", d, a, b)
    def mullo(self, d, a, b): return self.vop("v_mul_lo_u32", d, a, b)
    def mulhi(self, d, a, b): return self.vop("v_mul_hi_u32", d, a, b)
    def mul24(self, d, a, b): return self.vop("v_mul_u32_u24", d, a, b)
    def mad24(self, d, a, b, c): return self.vop("v_mad_u32_u24", d, a, b, c)
    def lshl(self, d, sh, a): return self.vop("v_lshlrev_b32", d, sh, a)
    def lshr(self, d, sh, a): return self.vop("v_lshrrev_b32", d, sh, a)
    def and_(self, d, a, b): return self.vop("v_and_b32", d, a, b)
    def or_(self, d, a, b): return self.vop("v_or_b32", d, a, b)
    def xor(self, d, a, b): return self.vop("v_xor_b32", d, a, b)
    def lshl_add(self, d, a, sh, c): return self.vop("v_lshl_add_u32", d, a, sh, c)
    def add3(self, d, a, b, c): return self.vop("v_add3_u32", d, a, b, c)
    def minu(self, d, a, b): return self.vop("v_min_u32", d, a, b)
    def cndmask(self, d, f, t, m): return self.vop("v_cndmask_b32", d, f, t, m, suffix="_e64")
    def cmp(self, cc, d, a, b): return self.vop(f"v_cmp_{cc}_u32", d, a, b, suffix="_e64")
    def readfirstlane(self, d, a): return self.vop("v_readfirstlane_b32", d, a)
    def fadd(self, d, a, b, dpp=None): return self.vop("v_add_f32", d, a, b, dpp=dpp)
    def fsub(self, d, a, b): return self.vop("v_sub_f32", d, a, b)
    def fmul(self, d, a, b, dpp=None):
        sfx = "_e64" if isinstance(a, Neg) or isinstance(b, Neg) else ""
        return self.vop("v_mul_f32", d, a, b, dpp=dpp, suffix=sfx)
    def fma(self, d, a, b, c): return self.vop("v_fma_f32", d, a, b, c)
    def fmamk(self, d, a, k, c): return self.vop("v_fmamk_f32", d, a, k, c)
    def fmax(self, d, a, b, dpp=None): return self.vop("v_max_f32", d, a, b, dpp=dpp)
    def fmax3(self, d, a, b, c): return self.vop("v_max3_f32", d, a, b, c)
    def exp(self, d, a): return self.vop("v_exp_f32", d, a, kind="trans")
    def rcp(self, d, a): return self.vop("v_rcp_f32", d, a, kind="trans")
    def rsq(self, d, a): return self.vop("v_rsq_f32", d, a, kind="trans")
    def log(self, d, a): return self.vop("v_log_f32", d, a, kind="trans")
    def cvtpk(self, d, a, b): return self.vop("v_cvt_pk_bf16_f32", d, a, b)
    def swap(self, w, a, b):
        op = f"v_permlane{w}_swap_b32"
        i = I(op, "swap", None, [a, b], writes=a.regs() + b.regs(), text=f"{op} {a}, {b}")
        return self.add(i)
    def mfma(self, shape, d, a, b, c):
        op, passes = {"32": ("v_mfma_f32_16x16x32_bf16", 4), "16": ("v_mfma_f32_16x16x16_bf16", 4),
                      "4": ("v_mfma_f32_4x4x4_16b_bf16", 2)}[shape]
        n = 4 if shape == "32" else 2
        assert a.n == n and b.n == n and d.n == 4, (shape, d, a, b)
        assert a.i % 2 == 0 and b.i % 2 == 0 and d.i % 2 == 0
        i = I(op, "mfma", d, [a, b, c], {"shape": shape}, text=f"{op} {d}, {a}, {b}, {opstr(c)}")
        i.passes = passes
        i.cread = opregs(c)
        return self.add(i)
    def dsr(self, op, d, addr, off=0, tag=None):
        assert 0 <= off < 65536
        if d.n > 1: assert d.i % 2 == 0
        i = I(op, "dsr", d, [addr], {"off": off}, mem=[(tag, "r")] if tag else [],
              text=f"{op} {d}, {addr}" + (f" offset:{off}" if off else ""))
        return self.add(i)
    def ds_read(self, d, addr, off=0, tag=None):
        return self.dsr({1: "ds_read_b32", 2: "ds_read_b64", 4: "ds_read_b128"}[d.n], d, addr, off, tag)
    def ds_read_tr(self, d, addr, off=0, tag=None): return self.dsr("ds_read_b64_tr_b16", d, addr, off, tag)
    def ds_read_u16(self, d, addr, off=0, tag=None): return self.dsr("ds_read_u16", d, addr, off, tag)
    def dsw(self, op, addr, s, off=0, tag=None):
        assert 0 <= off < 65536
        if s.n > 1: assert s.i % 2 == 0
        i = I(op, "dsw", None, [addr, s], {"off": off}, mem=[(tag, "w")] if tag else [],
              text=f"{op} {addr}, {s}" + (f" offset:{off}" if off else ""))
        return self.add(i)
    def ds_write(self, addr, s, off=0, tag=None):
        return self.dsw({1: "ds_write_b32", 2: "ds_write_b64", 4: "ds_write_b128"}[s.n], addr, s, off, tag)
    def ds_write_b16(self, addr, s, off=0, tag=None): return self.dsw("ds_write_b16", addr, s, off, tag)
    def bload(self, d, voff, srd, soff, off=0, flags="", group=None):
        op = {1: "buffer_load_dword", 2: "buffer_load_dwordx2", 4: "buffer_load_dwordx4"}[d.n]
        assert 0 <= off < 4096
        i = I(op, "vld", d, [voff, srd, soff], {"off": off}, mem=[("vm", "w")],
              text=f"{op} {d}, {voff}, {srd}, {opstr(soff)} offen" + (f" offset:{off}" if off else "") + (f" {flags}" if flags else ""))
        i.group = group
        return self.add(i)
    def dma(self, voff, srd, soff, flags="", tag=None, group=None):
        op = "buffer_load_dwordx4"
        i = I(op, "dma", None, [voff, srd, soff, M0], {"off": 0}, mem=[("vm", "w")] + ([(tag, "w")] if tag else []),
              text=f"{op} {voff}, {srd}, {opstr(soff)} offen" + (f" {flags}" if flags else "") + " lds")
        i.group = group
        return self.add(i)
    def bstore(self, s, voff, srd, soff, off=0, flags=""):
        op = {1: "buffer_store_dword", 2: "buffer_store_dwordx2", 4: "buffer_store_dwordx4"}[s.n]
        assert 0 <= off < 4096
        i = I(op, "vst", None, [s, voff, srd, soff], {"off": off}, mem=[("vm", "w")],
              text=f"{op} {s}, {voff}, {srd}, {opstr(soff)} offen" + (f" offset:{off}" if off else "") + (f" {flags}" if flags else ""))
        return self.add(i)
    def bundle(self, fn):
        p = Prog(); fn(p)
        b = I("bundle", "bundle")
        b.sub = p.items
        rd, wr = [], []
        for x in p.items:
            rd += [r for r in x.reads if r not in wr]
            wr += x.writes
            b.mem += x.mem
        b.reads = list(dict.fromkeys(rd + [("exec", 0)]))
        b.writes = [w for w in dict.fromkeys(wr) if w != ("exec", 0)]
        self.items.append(b); return b
    def masked(self, mask, fn):
        def g(p):
            p.s_mov64(EXEC, mask); fn(p); p.s_mov64(EXEC, -1)
        return self.bundle(g)
    def extend(self, items): self.items += items

def issue_cost(i):
    k = i.kind
    if k == "mfma": return 8 if i.mods["shape"] == "32" else 4
    if k in ("trans", "swap"): return 8
    if k == "bundle": return sum(issue_cost(x) for x in i.sub)
    if k in ("waitgrp", "label"): return 0
    return 4
def pipe_cost(i):
    return i.passes * 4 if i.kind == "mfma" else 0

MF_RAW = {2: 5, 4: 8}
MF_COV = {2: 4, 4: 6}
MF_WARC = {2: 1, 4: 3}

def is_valu(i): return i.kind in ("valu", "trans", "swap")

def need_states(p, c):
    n = 0
    pw, cr, cw = set(p.writes), set(c.reads), set(c.writes)
    pwv = {r for r in pw if r[0] == "v"}
    pws = {r for r in pw if r[0] == "s"}
    if p.kind == "mfma":
        if c.kind == "mfma":
            ab = set(opregs(c.srcs[0]) + opregs(c.srcs[1]))
            if pwv & ab: n = max(n, MF_RAW[p.passes])
            cc = set(c.cread)
            if pwv & cc:
                same = isinstance(c.srcs[2], R) and c.srcs[2].i == p.dst.i and c.srcs[2].n == p.dst.n and c.passes == p.passes and c.op == p.op
                n = max(n, (2 if p.passes == 2 else 0) if same else MF_COV[p.passes])
            elif pwv & cw: n = max(n, MF_COV[p.passes])
        elif c.kind in VEC_KINDS:
            if pwv & (cr | cw): n = max(n, MF_RAW[p.passes])
            if is_valu(c) and set(p.cread) & cw: n = max(n, MF_WARC[p.passes])
    elif is_valu(p):
        if c.kind == "mfma" and pwv & cr: n = max(n, 2)
        if is_valu(c):
            if "dpp" in c.mods and pwv & cr: n = max(n, 2)
            if c.kind == "swap" and pwv & cr: n = max(n, 2)
            if p.kind == "trans" and c.kind != "trans" and pwv & cr: n = max(n, 1)
            if c.op in ("v_readfirstlane_b32", "v_readlane_b32") and pwv & cr: n = max(n, 1)
            if pws & cr: n = max(n, 2)
        if p.kind == "trans" and c.kind in ("dsw", "dsr", "vst", "vld", "dma") and pwv & cr: n = max(n, 1)
        if c.kind in ("vld", "vst", "dma") and pws & cr: n = max(n, 5)
        if c.kind == "salu" and pws & cr: n = max(n, 1)
    elif p.kind == "vst":
        data = set(opregs(p.srcs[0]))
        if p.srcs[0].n >= 3 and data & cw: n = max(n, 2)
    elif p.kind == "salu":
        if ("m0", 0) in pw and c.kind == "dma": n = max(n, 1)
    return n

LAT_DS = 120
def latency(p, c, raw):
    if p.kind == "bundle":
        base = issue_cost(p)
        if raw and any(x.kind == "dsr" for x in p.sub): return base + LAT_DS
        return base
    if c.kind == "bundle":
        return max(latency(p, x, raw) for x in c.sub)
    ic = issue_cost(p)
    if raw and p.kind == "dsr": return LAT_DS if p.lat is None else p.lat
    if raw and p.kind == "vld": return 600
    if raw and p.kind == "smem": return 200
    ns = need_states(p, c)
    if p.kind == "mfma" and c.kind == "mfma" and ns == 0 and raw: return pipe_cost(p)
    if ns: return max(ic, 4) + 4 * ns
    if raw and is_valu(p): return ic + 4 if p.kind != "valu" else 8
    return ic

def schedule(items, window=None, verbose=False):
    out = []
    seg = []
    tot = 0
    for it in items:
        if it.kind in ("barrier", "label", "branch", "end", "raw", "wait", "nop"):
            o, t = _sched(seg); out += o; tot += t; seg = []; out.append(it)
        else:
            seg.append(it)
    o, t = _sched(seg); out += o; tot += t
    if verbose: print("  scheduled length (1-wave model):", tot)
    return out

def _sched(seg):
    n = len(seg)
    if n == 0: return [], 0
    preds = [dict() for _ in range(n)]
    lastw, readers = {}, {}
    memw, memr = {}, {}
    fence = None
    for j, c in enumerate(seg):
        def dep(i, raw):
            l = latency(seg[i], c, raw)
            if preds[j].get(i, -1) < l: preds[j][i] = l
        for r in c.reads:
            if r in lastw: dep(lastw[r], True)
        for r in c.writes:
            if r in lastw: dep(lastw[r], seg[lastw[r]].kind in ("dsr", "vld", "smem", "bundle"))
            for i in readers.get(r, ()):
                if i != j: dep(i, False)
        for tag, rw in c.mem:
            if tag in memw: dep(memw[tag], False)
            if rw == "w":
                for i in memr.get(tag, ()): dep(i, seg[i].kind in ("dsr", "bundle") and c.kind in ("dma",))
        if c.kind == "fence0":
            for i in range(j): dep(i, False)
            fence = j
        elif fence is not None:
            dep(fence, False)
        for r in c.reads: readers.setdefault(r, []).append(j)
        for r in c.writes: lastw[r] = j; readers[r] = []
        for tag, rw in c.mem:
            if rw == "w": memw[tag] = j; memr[tag] = []
            else: memr.setdefault(tag, []).append(j)
    succs = [[] for _ in range(n)]
    for j in range(n):
        for i, l in preds[j].items(): succs[i].append((j, l))
    cp = [0] * n
    for i in range(n - 1, -1, -1):
        cp[i] = max([issue_cost(seg[i])] + [l + cp[j] for j, l in succs[i]])
    npred = [len(preds[j]) for j in range(n)]
    est = [0] * n
    ready = [j for j in range(n) if npred[j] == 0]
    t = 0; pipe = 0; order = []
    lastmf = -100
    while ready:
        def start(j):
            s = max(t, est[j])
            if seg[j].kind == "mfma": s = max(s, pipe)
            return s
        now = [j for j in ready if start(j) <= t]
        if now:
            def key(j):
                k = seg[j].kind
                cls = 0 if k == "mfma" else (1 if k in ("dsr", "dma", "vld", "salu", "smem", "waitgrp") else 2)
                return (cls, -seg[j].prio, j)
            j = min(now, key=key)
        else:
            j = min(ready, key=lambda j: (start(j), j))
        s = start(j)
        ready.remove(j); order.append(j)
        c = seg[j]
        ic = issue_cost(c)
        if c.kind in ("salu", "waitgrp", "fence0") and t - lastmf == 8 and s == t: ic = 0
        t = s + ic
        if c.kind == "mfma":
            pipe = s + pipe_cost(c); lastmf = s if c.mods["shape"] == "32" else -100
        for k, l in succs[j]:
            est[k] = max(est[k], s + l)
            npred[k] -= 1
            if npred[k] == 0: ready.append(k)
    assert len(order) == n
    return [seg[j] for j in order], max(t, pipe)

def flatten(items):
    out = []
    for it in items:
        if it.kind == "bundle": out += it.sub
        else: out.append(it)
    return out

def insert_waits(items):
    out = []
    lg = []
    vm = []
    def mk(vmn=None, lgn=None):
        p = Prog(); return p.wait(vm=vmn, lgkm=lgn)
    for it in items:
        touched = set(it.reads) | set(it.writes)
        lgn = vmn = None
        if it.kind in ("label", "branch", "end", "barrier"):
            if it.kind in ("label", "branch"):
                assert not any(x[1] for x in lg), ("pending lds/smem loads across control flow", it.text)
                assert not any(x[1] for x in vm), ("pending vm loads across control flow", it.text)
                if it.kind == "label": lg, vm = [], []
            out.append(it); continue
        if it.kind == "wait":
            a, b = it.mods["vm"], it.mods["lgkm"]
            if a is not None: vm = vm[len(vm) - a:] if a else []
            if b is not None: lg = lg[len(lg) - b:] if b else []
            out.append(it); continue
        if it.kind == "waitgrp":
            idx = [k for k, x in enumerate(vm) if x[2] == it.mods["group"]]
            if idx:
                vmn = len(vm) - 1 - idx[-1]
                out.append(mk(vmn=min(vmn, 63))); vm = vm[len(vm) - vmn:] if vmn else []
            continue
        for k in range(len(lg) - 1, -1, -1):
            need = bool(lg[k][1] & touched)
            if it.kind == "dma" and lg[k][0] in ("dsr", "dsw") and lg[k][2] & {t for t, _ in it.mem if t != "vm"}: need = True
            if need:
                lgn = 0 if any(x[0] == "smem" for x in lg) else len(lg) - 1 - k
                break
        for k in range(len(vm) - 1, -1, -1):
            if vm[k][1] & touched:
                vmn = len(vm) - 1 - k; break
        if lgn is not None or vmn is not None:
            out.append(mk(vmn=None if vmn is None else min(vmn, 63), lgn=None if lgn is None else min(lgn, 15)))
            if lgn is not None: lg = lg[len(lg) - lgn:] if lgn else []
            if vmn is not None: vm = vm[len(vm) - vmn:] if vmn else []
        if it.kind in ("dsr", "smem"): lg.append((it.kind, set(it.writes), {t for t, _ in it.mem}))
        elif it.kind == "dsw": lg.append((it.kind, set(), {t for t, _ in it.mem}))
        elif it.kind == "vld": vm.append((it.kind, set(it.writes), it.group))
        elif it.kind in ("vst", "dma"): vm.append((it.kind, set(), it.group))
        out.append(it)
    return out

def states_of(i):
    if i.kind == "nop": return i.mods["n"] + 1
    if i.kind == "label": return 0
    return 1

def min_elapsed(seq, nxt):
    t = 0; pipe = 0; port = 0
    first = True
    for x in list(seq) + [nxt]:
        if x is not None and x.kind == "label": continue
        if not first:
            if x is not None and x.kind in ("valu", "trans", "swap", "mfma"): t = max(t, port)
            if x is not None and x.kind == "mfma": t = max(t, pipe)
        if x is nxt: return t
        first = False
        if x.kind == "mfma":
            pipe = t + pipe_cost(x); port = t + issue_cost(x)
        t += 4 * states_of(x)
    return t

def insert_nops(items):
    out = []
    MAXD = 10
    nn = 0
    def pad(it, needfn, stop_at_label):
        nonlocal nn
        while True:
            worst = 0
            lo = max(0, len(out) - MAXD)
            for k in range(len(out) - 1, lo - 1, -1):
                p = out[k]
                if p.kind == "label" and stop_at_label: break
                n = needfn(p)
                if n:
                    el = min_elapsed(out[k:], it)
                    worst = max(worst, (4 * (n + 1) - el + 3) // 4)
            if worst <= 0: return
            if out and out[-1].kind == "nop" and out[-1].mods.get("auto") and out[-1].mods["n"] < 15:
                out[-1].mods["n"] += 1; out[-1].text = f"s_nop {out[-1].mods['n']}"
            else:
                x = Prog().nop(0); x.mods["auto"] = True; out.append(x)
            nn += 1
    for it in items:
        if it.kind in ("branch", "label"):
            def w(p):
                if p.kind == "mfma": v = MF_RAW[p.passes]
                elif is_valu(p): v = 5 if any(r[0] == "s" for r in p.writes) else 2
                elif p.kind == "vst": v = 2
                elif p.kind == "salu" and ("m0", 0) in p.writes: v = 1
                else: v = 0
                return max(0, v - (1 if it.kind == "branch" else 0))
            pad(None, w, False)
            out.append(it); continue
        pad(it, lambda p: need_states(p, it), True)
        out.append(it)
    return out, nn

def finalize(items, sched=True, verbose=False, nops=True):
    if sched: items = schedule(items, verbose=verbose)
    items = flatten(items)
    items = insert_waits(items)
    nn = 0
    if nops: items, nn = insert_nops(items)
    if verbose:
        from collections import Counter
        c = Counter(i.kind for i in items)
        print("  kinds:", dict(c), "nop states:", nn, "vec issue:", sum(issue_cost(i) for i in items if i.kind in ("valu", "trans", "swap", "mfma")),
              "pipe:", sum(pipe_cost(i) for i in items))
    return items

def emit(items):
    return "\n".join((i.text if i.kind == "label" else "    " + i.text) for i in items)
```

```python
import math, sys
from ir import *

NB = 109734912; FR = 27433728; RW = 72576; NU = 2916
XB0 = 0; B1 = 36864; B2 = 73728; B3 = 110592; TOP = 147456
XB1 = B2
WA = B1; WB = B1 + 18432
RAWQ = B2; RAWO = B2 + 55296
G49 = B3; V49 = B3 + 9216; STG = B3 + 18432; SS = STG + 12288; ONESV = SS + 5120; V49S = ONESV + 256; C49S = V49S + 256
X49 = TOP; TS = TOP + 9216
LDS_BYTES = 163840
assert C49S + 256 <= TOP and TS + 4 * 1792 == LDS_BYTES
EPS96 = 96e-5
KA = math.sqrt(96.0) * math.log2(math.e)
KB = math.sqrt(96.0)
IDQ = "quad_perm:[0,1,2,3]"

class Cfg:
    nwg = 256
    ldflag = "nt"
    stflag = ""
    t_res = "mfma"
    s_res = "mfma"
    prio_s = 1; prio_t = 0
    prio_switch = None
    prefetch = True
    order = "stride"
    stamps = False
    def __init__(self, **kw):
        for k, v in kw.items():
            assert hasattr(self, k), k
            setattr(self, k, v)

sX = S(4, 4); sO = S(8, 4); sW = S(12, 4); sW2 = S(16, 4)
sP = S(20, 16)
sWave = S(36); sT = S(37); sNR = S(38); sK = S(39); sU0 = S(40); sUS = S(41)
sDiag = S(42, 2); sN12 = S(44, 2); sM1 = S(46, 2); sM2 = S(48, 2); sM3 = S(50, 2); sM49 = S(52, 2)
sTOff = S(54); sTog = S(55); sA = S(56); sB = S(57); sC = S(58); sLd = S(59); sSt = S(60); sXbase = S(61)
sAcnt = S(62); sAm = S(63); sBcnt = S(64); sBm = S(65); sRet = S(66); sWoff = S(67); sFirst = S(68); sD = S(69)
sDbg = S(72, 4); sTm = S(76, 2); sT0 = S(78, 2)

class Ring:
    def __init__(self, base, n, w): self.base, self.n, self.w, self.k = base, n, w, 0
    def next(self):
        r = V(self.base + self.w * (self.k % self.n), self.w); self.k += 1; return r

def unit_base(p, su, sd):
    p.s_mulhi(sA, su, 0x4BDA130)
    p.s_mul(sB, sA, 54); p.s_sub(sB, su, sB)
    p.s_mul(sA, sA, 7 * RW); p.s_mul(sB, sB, 1344); p.s_add(sd, sA, sB)

def round_base(p, kreg_plus, sd):
    def g(q):
        q.s_add(sC, sK, kreg_plus)
        q.s_mul(sD, sC, sUS); q.s_add(sD, sD, sU0)
        unit_base(q, sD, sd)
        q.s_add(sd, sd, sTOff)
        q.s_cmp("lt", sC, sNR); q.s_csel(sd, sd, NB)
    p.bundle(g)

def stamp(p, cfg, idx):
    if not cfg.stamps: return
    q = Prog()
    q.memtime(sTm); q.wait(lgkm=0)
    p.extend(q.items)
    p.raw(f"s_sub_u32 s76, s76, s78\n    v_mov_b32 v0, s76\n    s_lshl_b32 s77, s36, 7\n    s_add_u32 s77, s77, {4*idx}\n    s_lshl_b32 s70, s2, 10\n    s_add_u32 s77, s77, s70\n    s_nop 0\n    buffer_store_dword v0, off, s[72:75], s77\n    s_nop 1")

def gen_fusion(p):
    aDir, aTrq, aTro, aOut, aK, t0, t1 = (V(112 + i) for i in range(7))
    ONE = V(120, 4); KS = V(124, 24); WK = V(148, 12); FR_ = Ring(160, 8, 4); D = V(192, 24); RES = V(216, 12); tm = V(228, 4)
    lane = V(119)
    p.label("L_fuse")
    p.and_(lane, 63, V(0))
    p.and_(t0, 3, lane); p.lshr(t1, 2, lane); p.and_(t1, 3, t1)
    p.lshl_add(aDir, t1, 3, t0); p.mul24(aDir, 576, aDir)
    p.lshr(aK, 4, lane)
    p.lshl_add(aDir, aK, 4, aDir); p.addu(aDir, RAWQ, aDir)
    p.lshl_add(aTro, aK, 3, t1)
    p.mul24(aTrq, 576, aTro); p.lshl_add(aTrq, t0, 4, aTrq); p.addu(aTrq, RAWQ, aTrq)
    p.mul24(aTro, 192, aTro); p.lshl_add(aTro, t0, 4, aTro); p.addu(aTro, RAWO, aTro)
    for j in range(4): p.mov(ONE[j], 0x3F803F80)
    def center_out(p, kappa, wbase, sm):
        for j in range(4): p.fadd(tm[j], D[j], D[4 + j])
        for q in range(2, 6):
            for j in range(4): p.fadd(tm[j], tm[j], D[4 * q + j])
        p.fadd(tm[0], tm[0], tm[1]); p.fadd(tm[2], tm[2], tm[3]); p.fadd(tm[0], tm[0], tm[2])
        p.mov(tm[1], tm[0]); p.swap(32, tm[0], tm[1]); p.fadd(tm[0], tm[0], tm[1])
        p.mov(tm[1], tm[0]); p.swap(16, tm[0], tm[1]); p.fadd(tm[0], tm[0], tm[1])
        p.fmul(tm[0], -kappa / 96.0, tm[0])
        for j in range(24): p.fmamk(D[j], D[j], kappa, tm[0])
        for mc in range(6):
            for h in range(2): p.cvtpk(RES[2 * mc + h], D[4 * mc + 2 * h], D[4 * mc + 2 * h + 1])
        p.s_mul(sA, sm, 3072); p.s_add(sA, sA, wbase)
        p.lshl(aOut, 4, lane); p.addu(aOut, sA, aOut)
        for u in range(3): p.ds_write(aOut, RES[4 * u: 4 * u + 4], 1024 * u)
    def moff(p, sm, stride_row, stride_el):
        p.s_lshr(sA, sm, 1); p.s_lshl(sA, sA, 3); p.s_and(sB, sm, 1); p.s_add(sA, sA, sB); p.s_mul(sA, sA, 4 * stride_row)
    p.s_cmp("eq", sAcnt, 0); p.branch("scc1", "L_fuseB")
    for mj in range(6):
        for u in range(3):
            f = FR_.next()
            for h in range(2): p.ds_read_tr(f[2 * h: 2 * h + 2], aTrq, (32 * u + 4 * h) * 576 + 192 + 64 * (mj >> 1) + 8 * (mj & 1))
            p.mfma("32", KS[4 * mj: 4 * mj + 4], f, ONE, 0 if u == 0 else KS[4 * mj: 4 * mj + 4])
    for j in range(24): p.fmul(KS[j], -1.0 / 96.0, KS[j])
    p.label("L_fuseA")
    moff(p, sAm, 576, 0)
    p.addu(aK, sA, aDir)
    for u in range(3): p.ds_read(WK[4 * u: 4 * u + 4], aK, 192 + 64 * u)
    for j in range(12):
        p.lshl(tm[0], 16, WK[j]); p.and_(tm[1], 0xFFFF0000, WK[j])
        p.fadd(tm[0], tm[0], KS[2 * j]); p.fadd(tm[1], tm[1], KS[2 * j + 1])
        p.cvtpk(WK[j], tm[0], tm[1])
    for mc in range(6):
        for u in range(3):
            f = FR_.next()
            p.ds_read(f, aDir, (32 * (mc >> 1) + 4 * (mc & 1)) * 576 + 64 * u)
            p.mfma("32", D[4 * mc: 4 * mc + 4], f, WK[4 * u: 4 * u + 4], 0 if u == 0 else D[4 * mc: 4 * mc + 4])
    center_out(p, KA, WA, sAm)
    p.s_add(sAm, sAm, 1); p.s_sub(sAcnt, sAcnt, 1); p.s_cmp("lg", sAcnt, 0); p.branch("scc1", "L_fuseA")
    p.label("L_fuseB")
    p.s_cmp("eq", sBcnt, 0); p.branch("scc1", "L_fuseE")
    p.label("L_fuseB1")
    moff(p, sBm, 2, 0)
    p.addu(aK, sA, aTro)
    for u in range(3):
        for h in range(2): p.ds_read_tr(WK[4 * u + 2 * h: 4 * u + 2 * h + 2], aK, (32 * u + 4 * h) * 192)
    for mc in range(6):
        for u in range(3):
            f = FR_.next()
            p.ds_read(f, aDir, (32 * (mc >> 1) + 4 * (mc & 1)) * 576 + 384 + 64 * u)
            p.mfma("32", D[4 * mc: 4 * mc + 4], f, WK[4 * u: 4 * u + 4], 0 if u == 0 else D[4 * mc: 4 * mc + 4])
    center_out(p, KB, WB, sBm)
    p.s_add(sBm, sBm, 1); p.s_sub(sBcnt, sBcnt, 1); p.s_cmp("lg", sBcnt, 0); p.branch("scc1", "L_fuseB1")
    p.label("L_fuseE")
    p.wait(lgkm=0)
    p.s_cmp("eq", sRet, 0); p.branch("scc1", "L_ret0")
    p.branch(None, "L_ret1")

def raw_dma(p, srd, tmp):
    p.and_(tmp, 63, V(0)); p.lshl(tmp, 4, tmp)
    p.s_mul(sA, sWave, 9216); p.s_add(sA, sA, RAWQ)
    for j in range(9):
        def g(q, j=j):
            q.s_add(M0, sA, 1024 * j); q.s_add(sB, sWoff, 1024 * j); q.dma(tmp, srd, sB, group="raw")
        p.bundle(g)

class TR:
    AX = V(1, 3); ASW = V(4); ASR = V(5); AQR = V(6); APW = V(7); APR = V(8); SP = V(9); I4 = V(10, 2); ONES = V(12, 4)
    P = V(16, 6); A49 = V(22); DUM = V(23); GB = V(24, 24); ACC = 48; DD = V(64, 12); X = V(76, 36); FA = V(112, 72); FB = V(184, 72)

def gen_T_setup(p, cfg):
    T = TR
    lane, g, n, t0, t1, t2 = (V(24 + i) for i in range(6))
    p.and_(lane, 63, V(0)); p.lshr(g, 4, lane); p.and_(n, 15, lane)
    p.and_(t0, 3, n)
    p.lshr(t1, 2, n)
    for a in range(3):
        p.s_mul(sA, sT, 3); p.s_add(sA, sA, a)
        p.s_sub(sB, 0, sA); p.s_and(sB, sB, 3)
        p.lshr(t2, 1, t1); p.xor(t2, t2, g); p.xor(t2, t2, t0); p.xor(t2, sB, t2)
        p.mul24(T.AX[a], 9216, t0); p.lshl_add(T.AX[a], t2, 4, T.AX[a])
        p.mul24(t2, 192, t1); p.s_mul(sA, sA, 768); p.add3(T.AX[a], T.AX[a], t2, sA)
    p.s_mul(sA, sT, 1792); p.s_add(sA, sA, TS)
    p.lshl(T.ASW, 4, n); p.addu(T.ASW, sA, T.ASW)
    p.minu(t2, 47, lane)
    p.lshl(T.ASR, 4, t2); p.addu(T.ASR, sA, T.ASR)
    p.and_(T.AQR, 3, t2); p.lshl_add(T.AQR, T.AQR, 2, T.ASR); p.addu(T.AQR, 768, T.AQR)
    p.lshl(T.APW, 3, lane); p.addu(T.APW, sA, T.APW); p.addu(T.APW, 768, T.APW)
    p.lshl(T.APR, 3, n); p.addu(T.APR, sA, T.APR); p.addu(T.APR, 768, T.APR)
    p.mov(T.SP, 0)
    for j in range(6): p.mov(T.P[j], 0)
    for j in range(4): p.mov(T.ONES[j], 0x3F803F80)
    p.and_(t2, 1, lane); p.lshl(t2, 4, t2); p.mov(T.I4[0], 0x3F80); p.lshl(t2, t2, T.I4[0])
    p.and_(T.I4[1], 2, lane); p.cmp("eq", S(70, 2), 0, T.I4[1])
    p.cndmask(T.I4[0], 0, t2, S(70, 2)); p.cndmask(T.I4[1], t2, 0, S(70, 2))
    kk, U, q = V(30), V(31), V(32)
    p.s_mul(sA, sT, 3); p.addu(kk, sA, t1)
    p.mul24(T.A49, 12, t0); p.addu(T.A49, T.A49, kk); p.mul24(T.A49, 192, T.A49); p.lshl_add(T.A49, g, 4, T.A49); p.addu(T.A49, X49, T.A49)
    p.mullo(U, kk, sUS); p.addu(U, sU0, U)
    p.s_mov(sA, 0x4BDA130); p.mulhi(q, U, sA)
    p.mul24(t2, 54, q); p.subu(U, U, t2)
    p.s_mov(sA, 7 * RW); p.mullo(q, q, sA); p.mul24(U, 1344, U); p.addu(U, U, q)
    p.s_mov(sA, FR); p.mullo(q, t0, sA); p.addu(U, U, q); p.lshl_add(U, g, 4, U); p.addu(U, 6 * RW + 6 * 192, U)
    p.cmp("lt", S(70, 2), kk, sNR); p.mov(q, NB); p.cndmask(U, q, U, S(70, 2))
    p.cndmask(U, q, U, sN12)
    for u in range(3): p.bload(T.X[4 * u: 4 * u + 4], U, sX, 0, 64 * u, flags=cfg.ldflag, group="x49")

def gen_T_phase(p, cfg, NT, first49=False):
    T = TR
    acc = Ring(T.ACC, 4, 4)
    X = lambda a, u: T.X[12 * a + 4 * u: 12 * a + 4 * u + 4]
    FA = lambda m, u: T.FA[12 * m + 4 * u: 12 * m + 4 * u + 4]
    FB = lambda m, u: T.FB[12 * m + 4 * u: 12 * m + 4 * u + 4]
    if not first49:
        for a in range(NT):
            for u in range(3): p.ds_read(X(a, u), T.AX[a], 64 * u, tag=f"x{a}")
    DS, DG, DU = T.DD[0:4], T.DD[4:8], T.DD[8:12]
    for a in range(NT):
        G = T.GB[12 * (a & 1): 12 * (a & 1) + 12]
        for u in range(3): p.mfma("32", DG, X(a, u), X(a, u), 0 if u == 0 else DG)
        for u in range(3): p.mfma("32", DU, T.ONES, X(a, u), 0 if u == 0 else DU)
        p.mov(T.SP, DU[0], dpp=(IDQ, 1 << a, 0xF))
        for m in range(6):
            d = acc.next()
            for u in range(3): p.mfma("32", d, FA(m, u), X(a, u), 0 if u == 0 else d)
            p.cvtpk(G[2 * m], d[0], d[1]); p.cvtpk(G[2 * m + 1], d[2], d[3])
        for u in range(3): p.mfma("32", DS, X(a, u), G[4 * u: 4 * u + 4], 0 if u == 0 else DS)
        p.masked(sDiag, lambda q, a=a: (q.ds_write(T.ASW, DG, 768 + 256 * a, tag="ts"), q.ds_write(T.ASW, DS, 256 * a, tag="ts")))
    if cfg.mid_barrier and not first49:
        p.wait(lgkm=0)
        p.s_cmp("eq", sFirst, 0); p.branch("scc1", "L_Tnob"); p.barrier(); p.s_mov(sFirst, 0); p.label("L_Tnob")
    SQ = T.DD[0:4]; Q, Rr, M, L = T.DD[4], T.DD[5], T.DD[6], T.DD[7]; PP = T.DD[8:10]
    p.ds_read(SQ, T.ASR, 0, tag="ts"); p.ds_read(Q, T.AQR, 0, tag="ts")
    p.fmul(M, T.SP, T.SP); p.fmamk(Q, M, -1.0 / 96.0, Q); p.fmax(Q, 0, Q); p.fadd(Q, EPS96, Q); p.rsq(Rr, Q)
    for s in range(4): p.fmul(SQ[s], Rr, SQ[s], dpp=(f"quad_perm:[{s},{s},{s},{s}]", 0xF, 0xF))
    p.fmax3(M, SQ[0], SQ[1], SQ[2]); p.fmax(M, M, SQ[3]); p.fmul(M, Neg(M), Rr)
    for s in range(4): p.fma(SQ[s], SQ[s], Rr, M)
    for s in range(4): p.exp(SQ[s], SQ[s])
    p.fadd(L, SQ[0], SQ[1]); p.fadd(M, SQ[2], SQ[3]); p.fadd(L, L, M); p.rcp(L, L)
    for s in range(4): p.fmul(SQ[s], Rr, SQ[s], dpp=(f"quad_perm:[{s},{s},{s},{s}]", 0xF, 0xF))
    for s in range(4): p.fmul(SQ[s], SQ[s], L)
    p.cvtpk(PP[0], SQ[0], SQ[1]); p.cvtpk(PP[1], SQ[2], SQ[3])
    p.ds_write(T.APW, PP, 0, tag="ts")
    p.masked(sDiag, lambda q: [q.ds_read(T.P[2 * a: 2 * a + 2], T.APR, 128 * a, tag="ts") for a in range(NT)])
    vp = Ring(24, 8, 2); qr = Ring(40, 6, 4); outr = Ring(64, 3, 4)
    for a in range(NT):
        for m in range(6):
            d = qr.next(); v = vp.next()
            for u in range(3): p.mfma("32", d, X(a, u), FB(m, u), 0 if u == 0 else d)
            p.cvtpk(v[0], d[0], d[1]); p.cvtpk(v[1], d[2], d[3])
            o = qr.next()
            xp = T.X[12 * a + 2 * m: 12 * a + 2 * m + 2]
            if cfg.t_res == "mfma":
                p.mfma("4", o, T.I4, xp, 0)
            else:
                for h in range(2):
                    p.lshl(o[2 * h], 16, xp[h]); p.and_(o[2 * h + 1], 0xFFFF0000, xp[h])
            p.mfma("16", o, v, T.P[2 * a: 2 * a + 2], o)
            if (m & 1) == 0: ot = outr.next()
            p.cvtpk(ot[2 * (m & 1)], o[0], o[1]); p.cvtpk(ot[2 * (m & 1) + 1], o[2], o[3])
            if m & 1:
                if first49:
                    p.masked(sN12, lambda q, ot=ot, m=m: q.ds_write(T.A49, ot, 64 * (m >> 1), tag="x49"))
                else:
                    p.ds_write(T.AX[a], ot, 64 * (m >> 1), tag=f"x{a}")
    if not first49:
        for a in range(3): p.addu(T.AX[a], sTog, T.AX[a])
        p.s_sub(sTog, 0, sTog)

class SR:
    VOFF = V(1, 9); AXS = V(10); AWF = V(11); AAUX = V(12); AX49 = V(13); AV49 = V(14); ASW = V(15); AQR = V(16); ARW = V(17)
    ASGW = V(18); ARK = V(19); ARQ = V(20); ASTW = V(21); ASTR = V(22); VO49 = V(23); WT = V(24); INC1 = V(25); INC2 = V(26); SP = V(27)
    I4 = V(28, 2); Z = V(30); DUM = V(31)
    X = V(32, 36); G = V(68, 36); VP = V(104, 48); RK = V(152, 12); SIG = V(164, 8); PA = V(172, 8); PB = V(180, 8); SA = V(188, 12)
    WF = V(200, 24); ACC = 224
    RQ = V(240, 3); R49 = V(243); R49Q = V(244); T13 = V(245, 3); Q = V(248); Rr = V(249); M = V(250); TM = V(251); L = V(252); M2 = V(253); TM2 = V(254); RL = V(255)

def gen_S_setup(p, cfg):
    Sr = SR
    lane, g, n, t0, t1, t2, t3, t4 = (V(32 + i) for i in range(8))
    p.and_(lane, 63, V(0)); p.lshr(g, 4, lane); p.and_(n, 15, lane)
    p.s_mov(sA, 0x15555556); p.s_mov(sB, 0x24924925); p.s_mov(sC, RW - 7 * 192)
    for i in range(9):
        p.addu(t0, 64 * i, lane)
        p.mulhi(t1, t0, sA)
        p.mul24(t2, 12, t1); p.subu(t0, t0, t2)
        p.lshr(t2, 2, t1); p.subu(t2, 0, t2); p.lshr(t3, 1, t1); p.and_(t3, 1, t3); p.xor(t2, t2, t3); p.xor(t2, sT, t2); p.and_(t2, 3, t2)
        p.xor(t0, t0, t2)
        p.mulhi(t2, t1, sB); p.mullo(t2, t2, sC)
        p.mul24(t1, 192, t1); p.lshl_add(t0, t0, 4, t1); p.addu(Sr.VOFF[i], t0, t2)
    p.lshr(t2, 2, n); p.subu(t2, 0, t2); p.lshr(t3, 1, n); p.and_(t3, 1, t3); p.xor(t2, t2, t3); p.xor(t2, sT, t2); p.xor(t2, t2, g); p.and_(t2, 3, t2)
    p.mul24(t3, 192, n); p.lshl_add(t3, t2, 4, t3)
    p.s_mul(sXbase, sT, 9216)
    p.addu(Sr.AXS, sXbase, t3)
    p.s_mul(sA, sT, 3072); p.s_add(sA, sA, STG)
    p.addu(Sr.ASTW, sA, t3)
    p.lshl(t3, 4, lane); p.addu(Sr.ASTR, sA, t3); p.addu(Sr.AWF, WA, t3)
    p.s_mul(sA, sT, 2304)
    p.lshl(t3, 4, g)
    p.s_add(sB, sA, X49); p.addu(Sr.AX49, sB, t3)
    p.s_add(sB, sA, G49); p.addu(t0, sB, t3)
    p.s_lshl(sB, sT, 4); p.s_add(sB, sB, ONESV); p.mov(t1, sB)
    p.and_(t2, 1, lane); p.cmp("eq", S(70, 2), 0, t2)
    p.cndmask(Sr.AAUX, t1, t0, S(70, 2)); p.mov(t1, 192); p.cndmask(Sr.INC1, 0, t1, S(70, 2))
    p.lshr(t0, 2, n); p.and_(t1, 3, n); p.lshl_add(t0, t0, 3, t1); p.lshl(t0, 1, t0)
    p.s_add(sB, sA, V49); p.addu(Sr.AV49, sB, t0)
    p.s_mul(sA, sT, 1280); p.s_add(sA, sA, SS)
    p.lshl(t0, 4, n); p.addu(Sr.ASW, sA, t0)
    p.lshl(t0, 4, lane); p.and_(t1, 3, lane); p.lshl_add(t0, t1, 2, t0); p.addu(t0, sA, t0)
    p.s_lshl(sB, sT, 6); p.s_add(sB, sB, V49S); p.mov(t1, sB)
    p.cmp("gt", S(70, 2), 48, lane)
    p.cndmask(Sr.AQR, t1, t0, S(70, 2)); p.cndmask(Sr.INC2, 4, 0, S(70, 2))
    p.mov(t1, 0.25); p.cndmask(Sr.WT, t1, 1.0, S(70, 2))
    p.s_add(sB, sA, 768)
    p.lshl(t0, 2, lane); p.addu(Sr.ARW, sB, t0)
    p.lshl(t0, 4, g); p.addu(Sr.ARK, sB, t0)
    p.lshl(t0, 2, n); p.addu(Sr.ARQ, sB, t0)
    p.lshr(t0, 1, g); p.lshl(t0, 5, t0); p.lshr(t1, 2, n); p.lshl_add(t0, t1, 3, t0); p.and_(t1, 1, g); p.lshl_add(t0, t1, 2, t0); p.and_(t1, 3, n); p.addu(t0, t0, t1)
    p.lshl(t0, 1, t0); p.s_add(sB, sA, 1024); p.addu(Sr.ASGW, sB, t0)
    p.lshl(t0, 4, g); p.addu(t0, 6 * RW + 6 * 192, t0); p.mov(t1, 0x40000000); p.cmp("eq", S(70, 2), 0, n); p.cndmask(Sr.VO49, t1, t0, S(70, 2))
    p.mov(Sr.SP, 0)
    p.and_(t2, 1, lane); p.lshl(t2, 4, t2); p.mov(Sr.I4[0], 0x3F80); p.lshl(t2, t2, Sr.I4[0])
    p.and_(Sr.I4[1], 2, lane); p.cmp("eq", S(70, 2), 0, Sr.I4[1])
    p.cndmask(Sr.I4[0], 0, t2, S(70, 2)); p.cndmask(Sr.I4[1], t2, 0, S(70, 2))

def x_dma(p, cfg, kplus, bufreg_or_const, tag=None):
    round_base(p, kplus, sLd)
    for i in range(9):
        def g(q, i=i):
            q.s_add(M0, bufreg_or_const, 1024 * i); q.dma(SR.VOFF[i], sX, sLd, flags=cfg.ldflag, tag=tag, group="xdma")
        p.bundle(g)

def gen_S49(p, cfg):
    Sr = SR
    X = Sr.X[0:12]; G = Sr.G[0:12]; VT = Sr.G[12:24]; ONE = Sr.G[24:28]
    lane, g, n, a0, a1, t0 = (Sr.X[12 + i] for i in range(6))
    wf = Ring(Sr.WF.i, 6, 4); acc = Ring(Sr.ACC, 4, 4)
    p.and_(lane, 63, V(0)); p.lshr(g, 4, lane); p.and_(n, 15, lane)
    p.minu(t0, 11, n); p.mul24(t0, 192, t0); p.addu(a0, Sr.AX49, t0)
    for u in range(3): p.ds_read(X[4 * u: 4 * u + 4], a0, 64 * u)
    for j in range(4): p.mov(ONE[j], 0x3F803F80)
    p.s_lshl(sB, sT, 4); p.s_add(sB, sB, ONESV); p.mov(a1, sB)
    for u in range(3): p.ds_write(a1, ONE, 64 * u, tag="ones")
    for (W, dst) in ((0, G), (18432, VT)):
        for m in range(6):
            d = acc.next()
            for u in range(3):
                f = wf.next(); p.ds_read(f, Sr.AWF, W + (3 * m + u) * 1024)
                p.mfma("32", d, f, X[4 * u: 4 * u + 4], 0 if u == 0 else d)
            p.cvtpk(dst[2 * m], d[0], d[1]); p.cvtpk(dst[2 * m + 1], d[2], d[3])
    p.addu(a0, G49 - X49 + (1 << 32), a0)
    p.masked(sN12, lambda q: [q.ds_write(a0, G[4 * u: 4 * u + 4], 64 * u, tag="g49") for u in range(3)] +
                             [q.ds_write(a0, VT[4 * u: 4 * u + 4], 9216 + 64 * u, tag="g49") for u in range(3)])
    DG, DU, DC = Sr.SA[0:4], Sr.SA[4:8], Sr.SA[8:12]
    for u in range(3): p.mfma("32", DG, X[4 * u: 4 * u + 4], X[4 * u: 4 * u + 4], 0 if u == 0 else DG)
    for u in range(3): p.mfma("32", DU, ONE, X[4 * u: 4 * u + 4], 0 if u == 0 else DU)
    for u in range(3): p.mfma("32", DC, X[4 * u: 4 * u + 4], G[4 * u: 4 * u + 4], 0 if u == 0 else DC)
    for D in (DG, DC):
        p.cndmask(D[0], D[0], D[1], sM1); p.cndmask(D[0], D[0], D[2], sM2); p.cndmask(D[0], D[0], D[3], sM3)
    p.fmul(DU[0], DU[0], DU[0]); p.fmamk(DG[0], DU[0], -1.0 / 96.0, DG[0])
    p.s_lshl(sB, sT, 6); p.s_add(sB, sB, V49S); p.lshl(a1, 2, n); p.addu(a1, sB, a1)
    p.masked(sDiag, lambda q: (q.ds_write(a1, DG[0], 0, tag="v49s"), q.ds_write(a1, DC[0], 256, tag="v49s")))
    for m in range(6): p.mov(Sr.VP[24 + 4 * m + 3], 0)
    p.mov(Sr.PA[7], 0)

def allreduce(p, op, x, t, full):
    if full:
        for k in (8, 4, 2, 1): op(x, x, x, dpp=(f"row_ror:{k}", 0xF, 0xF))
    for w in (32, 16):
        p.mov(t, x); p.swap(w, x, t); op(x, x, t)

def gen_S_phase(p, cfg):
    Sr = SR
    X = lambda a, u: Sr.X[12 * a + 4 * u: 12 * a + 4 * u + 4]
    G = lambda a, u: Sr.G[12 * a + 4 * u: 12 * a + 4 * u + 4]
    VP = lambda k, m: Sr.VP[24 * k + 4 * m: 24 * k + 4 * m + 4]
    AUX = lambda u: Sr.VP[4 * u: 4 * u + 4]
    X49A = lambda u: Sr.VP[12 + 4 * u: 16 + 4 * u]
    wf = Ring(Sr.WF.i, 6, 4); acc = Ring(Sr.ACC, 4, 4)
    for a in range(3):
        for u in range(3): p.ds_read(X(a, u), Sr.AXS, 3072 * a + 64 * u, tag="xb")
    for u in range(3): p.ds_read(AUX(u), Sr.AAUX, 64 * u)
    p.ds_read(Sr.Z, Sr.AQR, 256, tag="ss")
    x_dma(p, cfg, 2, sXbase, tag="xb")
    round_base(p, 0, sSt)
    for a in range(3):
        d = acc.next()
        for u in range(3): p.mfma("32", d, X(a, u), X(a, u), 0 if u == 0 else d)
        p.masked(sDiag, lambda q, a=a, d=d: q.ds_write(Sr.ASW, d, 256 * a, tag="ss"))
        d = acc.next()
        for u in range(3): p.mfma("32", d, AUX(u), X(a, u), 0 if u == 0 else d)
        p.mov(Sr.Z, d[0], dpp=(IDQ, 1 << a, 0xF)); p.mov(Sr.SP, d[1], dpp=(IDQ, 1 << a, 0xF))
    for u in range(3): p.ds_read(X49A(u), Sr.AX49, 64 * u)
    Q, Rr, M, TM, L = Sr.Q, Sr.Rr, Sr.M2, Sr.TM2, Sr.L
    p.ds_read(Q, Sr.AQR, 0, tag="ss")
    p.fmul(M, Sr.SP, Sr.SP); p.fmamk(Q, M, -1.0 / 96.0, Q); p.fmax(Q, 0, Q); p.fadd(Q, EPS96, Q); p.rsq(Rr, Q)
    p.ds_write(Sr.ARW, Rr, 0, tag="ss")
    p.fmul(Q, Q, Rr); p.cvtpk(Q, Q, Q); p.ds_write_b16(Sr.ASGW, Q, 0, tag="ss")
    p.ds_read(Sr.R49, Sr.ARK, 192, tag="ss")
    for a in range(3): p.ds_read(Sr.RK[4 * a: 4 * a + 4], Sr.ARK, 64 * a, tag="ss")
    for a in range(3): p.ds_read(Sr.RQ[a], Sr.ARQ, 64 * a, tag="ss")
    for k in range(2): p.ds_read(Sr.SIG[4 * k: 4 * k + 4], Sr.ARK, 256 + 64 * k, tag="ss")
    p.fmul(Sr.R49Q, 0.25, Sr.R49)
    Z = Sr.Z
    p.fmul(Z, Z, Rr); p.fmul(Z, Z, Sr.R49); p.mov(TM, 0xFF800000); p.cndmask(Z, TM, Z, sM49)
    p.mov(M, Z); allreduce(p, p.fmax, M, TM, True)
    p.fsub(Z, Z, M); p.exp(Z, Z); p.fmul(Z, Z, Sr.WT)
    p.mov(M, Z); allreduce(p, p.fadd, M, TM, True)
    p.rcp(M, M); p.fmul(Z, Z, Rr); p.fmul(Z, Z, M); p.cvtpk(Z, Z, Z)
    p.ds_write_b16(Sr.ASGW, Z, 128, tag="ss")
    for k in range(2): p.ds_read(Sr.PB[4 * k: 4 * k + 4], Sr.ARK, 384 + 64 * k, tag="ss")
    for m in range(6):
        fs = []
        for u in range(3):
            f = wf.next(); p.ds_read(f, Sr.AWF, (3 * m + u) * 1024); fs.append(f)
        for a in range(3):
            d = acc.next()
            for u in range(3): p.mfma("32", d, fs[u], X(a, u), 0 if u == 0 else d)
            p.cvtpk(Sr.G[12 * a + 2 * m], d[0], d[1]); p.cvtpk(Sr.G[12 * a + 2 * m + 1], d[2], d[3])
    for a in range(3):
        d = acc.next()
        for u in range(3): p.mfma("32", d, X49A(u), G(a, u), 0 if u == 0 else d)
        p.fmul(Sr.T13[a], d[0], Sr.R49)
    def scores(a, Sb):
        for b in range(3):
            d = Sb[4 * b: 4 * b + 4]
            for u in range(3): p.mfma("32", d, X(b, u), G(a, u), 0 if u == 0 else d)
    def softmax(a, Sb, P):
        M, TM = Sr.M, Sr.TM; T13 = Sr.T13[a]
        for i in range(12): p.fmul(Sb[i], Sb[i], Sr.RK[i])
        p.fmax3(M, Sb[0], Sb[1], T13); p.fmax3(TM, Sb[2], Sb[3], Sb[4])
        p.fmax3(M, M, Sb[5], Sb[6]); p.fmax3(TM, TM, Sb[7], Sb[8])
        p.fmax3(M, M, Sb[9], Sb[10]); p.fmax3(M, M, TM, Sb[11])
        allreduce(p, p.fmax, M, TM, False)
        p.fmul(M, Neg(M), Sr.RQ[a])
        for i in range(12): p.fma(Sb[i], Sb[i], Sr.RQ[a], M)
        p.fma(T13, T13, Sr.RQ[a], M)
        for i in range(12): p.exp(Sb[i], Sb[i])
        p.exp(T13, T13)
        for i in range(12): p.fmul(Sb[i], Sb[i], Sr.RK[i])
        p.fmul(T13, T13, Sr.R49Q)
        for j in range(6): p.cvtpk(P[j], Sb[2 * j], Sb[2 * j + 1])
        p.cvtpk(P[6], T13, 0)
    def pv(a, P):
        d = acc.next()
        for k in range(2): p.mfma("32", d, Sr.SIG[4 * k: 4 * k + 4], P[4 * k: 4 * k + 4], 0 if k == 0 else d)
        p.rcp(Sr.RL, d[0])
        for m in range(6):
            d = acc.next()
            for k in range(2): p.mfma("32", d, VP(k, m), P[4 * k: 4 * k + 4], 0 if k == 0 else d)
            xp = Sr.X[12 * a + 2 * m: 12 * a + 2 * m + 2]
            if cfg.s_res == "mfma":
                for j in range(4): p.fmul(d[j], d[j], Sr.RL)
                p.mfma("4", d, Sr.I4, xp, d)
            else:
                for h in range(2):
                    p.lshl(Sr.Q, 16, xp[h]); p.and_(Sr.Rr, 0xFFFF0000, xp[h])
                    p.fma(d[2 * h], d[2 * h], Sr.RL, Sr.Q); p.fma(d[2 * h + 1], d[2 * h + 1], Sr.RL, Sr.Rr)
            p.cvtpk(Sr.G[12 * a + 2 * m], d[0], d[1]); p.cvtpk(Sr.G[12 * a + 2 * m + 1], d[2], d[3])
            if m & 1: p.ds_write(Sr.ASTW, G(a, m >> 1), 64 * (m >> 1), tag="stg")
        for i in range(3): p.ds_read(G(a, i), Sr.ASTR, 1024 * i, tag="stg")
        for i in range(3): p.bstore(G(a, i), Sr.VOFF[3 * a + i], sO, sSt, flags=cfg.stflag)
    SB = Sr.WF[0:12]
    scores(0, Sr.SA); softmax(0, Sr.SA, Sr.PA)
    for m in range(6): p.ds_read_u16(VP(1, m)[2], Sr.AV49, 64 * (m >> 1) + 8 * (m & 1))
    for m in range(6):
        fs = []
        for u in range(3):
            f = wf.next(); p.ds_read(f, Sr.AWF, 18432 + (3 * m + u) * 1024); fs.append(f)
        for a in range(3):
            d = acc.next()
            for u in range(3): p.mfma("32", d, X(a, u), fs[u], 0 if u == 0 else d)
            dst = VP(a >> 1, m)
            p.cvtpk(dst[2 * (a & 1)], d[0], d[1]); p.cvtpk(dst[2 * (a & 1) + 1], d[2], d[3])
    if cfg.prio_switch == 0: p.setprio(0)
    scores(1, SB)
    XR = Sr.WF[12:24]
    for u in range(3): p.ds_read(XR[4 * u: 4 * u + 4], Sr.AX49, 64 * u)
    for m in range(6):
        d = acc.next()
        p.mfma("4", d, Sr.I4, XR[2 * m: 2 * m + 2], 0)
        for k in range(2): p.mfma("32", d, VP(k, m), Sr.PB[4 * k: 4 * k + 4], d)
        p.cvtpk(XR[2 * m], d[0], d[1]); p.cvtpk(XR[2 * m + 1], d[2], d[3])
    for u in range(3): p.bstore(XR[4 * u: 4 * u + 4], Sr.VO49, sO, sSt, 64 * u, flags=cfg.stflag)
    softmax(1, SB, Sr.PB)
    pv(0, Sr.PA)
    if cfg.prio_switch == 1: p.setprio(0)
    scores(2, Sr.SA); softmax(2, Sr.SA, Sr.PA)
    pv(1, Sr.PB)
    if cfg.prio_switch == 2: p.setprio(0)
    pv(2, Sr.PA)
    p.addu(Sr.AAUX, Sr.AAUX, Sr.INC1); p.addu(Sr.AX49, 192, Sr.AX49); p.addu(Sr.AV49, 192, Sr.AV49); p.addu(Sr.AQR, Sr.AQR, Sr.INC2)
    p.addu(Sr.AXS, sTog, Sr.AXS); p.s_add(sXbase, sXbase, sTog); p.s_sub(sTog, 0, sTog)
    p.wait_group("xdma", mem=[("vm", "w")])

def gen_kernel(cfg, verbose=False):
    cfg.mid_barrier = True
    blocks = []
    def blk(name, fn, sched=True):
        p = Prog(); fn(p)
        if verbose: print(name)
        blocks.append(finalize(p.items, sched=sched, verbose=verbose))
    def entry(p):
        p.s_cmp("ge", S(2), cfg.nwg); p.branch("scc1", "L_end")
        p.s_load(sP, S(0, 2), 0)
        if cfg.stamps: p.memtime(sT0)
        p.lshr(V(1), 6, V(0)); p.readfirstlane(sWave, V(1))
        p.s_and(sT, sWave, 3)
        if cfg.order == "stride":
            p.s_mov(sU0, S(2)); p.s_mov(sUS, cfg.nwg)
            p.s_cmp("lt", S(2), NU % cfg.nwg); p.s_csel(sNR, NU // cfg.nwg + 1, NU // cfg.nwg)
        elif cfg.order == "chunk":
            p.s_mul(sU0, S(2), NU); p.s_add(sA, sU0, NU); p.s_lshr(sU0, sU0, 8); p.s_lshr(sA, sA, 8); p.s_sub(sNR, sA, sU0); p.s_mov(sUS, 1)
        elif cfg.order == "xcd":
            p.s_and(sA, S(2), 7); p.s_lshr(sB, S(2), 3)
            p.s_mul(sC, sA, NU); p.s_add(sD, sC, NU); p.s_lshr(sC, sC, 3); p.s_lshr(sD, sD, 3)
            p.s_add(sU0, sC, sB); p.s_mov(sUS, cfg.nwg // 8)
            p.s_sub(sA, sD, sU0); p.s_add(sA, sA, cfg.nwg // 8 - 1); p.s_lshr(sNR, sA, int(math.log2(cfg.nwg // 8)))
        p.s_mov(sK, 0); p.s_mul(sTOff, sT, FR); p.s_mov(sTog, XB1 - XB0)
        for r, lo, hi in ((sDiag, 0x00F0000F, 0xF0000F00), (sN12, 0x0FFF0FFF, 0x0FFF0FFF), (sM1, 0x22222222, 0x22222222), (sM2, 0x44444444, 0x44444444),
                          (sM3, 0x88888888, 0x88888888), (sM49, 0xFFFFFFFF, 0x1111FFFF)):
            p.s_mov(r[0], lo); p.s_mov(r[1], hi)
        p.wait(lgkm=0)
        p.s_mov(sX[0], sP[0]); p.s_mov(sX[1], sP[1]); p.s_mov(sX[2], NB); p.s_mov(sX[3], 0x20000)
        p.s_mov(sO[0], sP[10]); p.s_mov(sO[1], sP[11]); p.s_mov(sO[2], NB); p.s_mov(sO[3], 0x20000)
        if cfg.stamps:
            p.s_mov(sDbg[0], sP[14]); p.s_mov(sDbg[1], sP[15]); p.s_mov(sDbg[2], 256 * 1024); p.s_mov(sDbg[3], 0x20000)
        def sel(q):
            q.s_mov(sA, 18432); q.s_cmp("lt", sWave, 6)
            q.s_csel(sW[0], sP[2], sP[4]); q.s_csel(sW[1], sP[3], sP[5]); q.s_csel(sW[2], 55296, sA)
            q.s_csel(sW2[0], sP[6], sP[8]); q.s_csel(sW2[1], sP[7], sP[9]); q.s_csel(sW2[2], 55296, sA)
            q.s_csel(sA, 0, 6); q.s_sub(sA, sWave, sA); q.s_mul(sWoff, sA, 9216)
        p.bundle(sel)
        p.s_mov(sW[3], 0x20000); p.s_mov(sW2[3], 0x20000)
        def jobs(q):
            q.s_cmp("lt", sWave, 6); q.s_csel(sAcnt, 1, 0); q.s_csel(sBcnt, 0, 3)
            q.s_mov(sAm, sWave); q.s_sub(sA, sWave, 6); q.s_mul(sBm, sA, 3)
        p.bundle(jobs)
        p.s_mov(sRet, 0); p.s_mov(sFirst, 1)
        p.s_cmp("ge", sWave, 4); p.branch("scc1", "L_Sinit")
    blk("entry", entry)
    def tinit(p):
        gen_T_setup(p, cfg)
        raw_dma(p, sW, V(40))
        if cfg.prefetch:
            p.and_(V(41), 63, V(0)); p.lshl(V(41), 7, V(41))
            p.s_mov(S(80), sP[6]); p.s_mov(S(81), sP[7]); p.s_mov(S(82), 55296); p.s_mov(S(83), 0x20000)
            p.s_mov(S(84), sP[8]); p.s_mov(S(85), sP[9]); p.s_mov(S(86), 18432); p.s_mov(S(87), 0x20000)
            p.s_lshl(sA, sT, 14); p.s_add(sB, sA, 8192); p.s_lshl(sC, sT, 13)
            for srd, so in ((S(80, 4), sA), (S(80, 4), sB), (S(84, 4), sC)):
                i = p.bload(TR.DUM, V(41), srd, so); i.writes = []
        p.wait_group("raw", mem=[("vm", "w")])
        p.branch(None, "L_go0")
    blk("T init", tinit)
    def sinit(p):
        p.label("L_Sinit")
        raw_dma(p, sW, V(40))
        gen_S_setup(p, cfg)
        x_dma(p, cfg, 0, sXbase)
        if cfg.prefetch:
            round_base(p, 1, sSt)
            for i in range(9):
                j = p.bload(SR.DUM, SR.VOFF[i], sX, sSt); j.writes = []
        p.wait_group("raw", mem=[("vm", "w")])
        p.label("L_go0")
        stamp(p, cfg, 0)
        p.barrier()
    blk("S init", sinit)
    blk("fusion", gen_fusion)
    def ret0(p):
        p.label("L_ret0")
        stamp(p, cfg, 1)
        p.barrier()
        raw_dma(p, sW2, V(112))
        p.s_cmp("ge", sWave, 4); p.branch("scc1", "L_S1")
        p.and_(V(24), 63, V(0)); p.lshl(V(24), 4, V(24)); p.addu(V(24), WA, V(24))
        for j in range(36): p.ds_read(V(112 + 4 * j, 4), V(24), 1024 * j)
        p.wait(vm=0, lgkm=0)
        stamp(p, cfg, 2)
        p.barrier()
        if cfg.prio_t: p.setprio(cfg.prio_t)
    blk("T load", ret0)
    def t49(p):
        gen_T_phase(p, cfg, 1, first49=True)
        p.wait(lgkm=0)
        stamp(p, cfg, 3)
    blk("T 49", t49)
    def tloop(p):
        p.label("L_Tloop")
        gen_T_phase(p, cfg, 3)
        p.s_add(sK, sK, 1)
        p.wait(lgkm=0)
        if cfg.stamps:
            p.s_cmp("eq", sK, 5); p.branch("scc0", "L_Tns"); stamp(p, cfg, 8); p.label("L_Tns")
        p.barrier()
        if cfg.stamps:
            p.s_cmp("eq", sK, 4); p.branch("scc0", "L_Tns2"); stamp(p, cfg, 7); p.label("L_Tns2")
        p.s_cmp("lt", sK, sNR); p.branch("scc1", "L_Tloop")
        stamp(p, cfg, 10)
        p.branch(None, "L_end")
    blk("T loop", tloop)
    def s1(p):
        p.label("L_S1")
        def jobs(q):
            q.s_cmp("lt", sT, 2); q.s_csel(sAcnt, 2, 1); q.s_csel(sBcnt, 0, 3)
            q.s_lshl(sA, sT, 1); q.s_add(sB, sT, 2); q.s_cmp("lt", sT, 2); q.s_csel(sAm, sA, sB)
            q.s_sub(sA, sT, 2); q.s_mul(sBm, sA, 3)
        p.bundle(jobs)
        p.s_mov(sRet, 1)
        p.wait(vm=0)
        stamp(p, cfg, 2)
        p.barrier()
        p.branch(None, "L_fuse")
        p.label("L_ret1")
        stamp(p, cfg, 3)
        p.barrier()
        p.s_add(sC, sXbase, XB1 - XB0); p.s_mov(S(70), sC)
        x_dma(p, cfg, 1, S(70))
        gen_S49(p, cfg)
        p.wait(vm=0, lgkm=0)
        stamp(p, cfg, 4)
    blk("S prologue", s1)
    def sloop(p):
        p.label("L_Sloop")
        p.barrier()
        if cfg.stamps:
            p.s_cmp("eq", sK, 3); p.branch("scc0", "L_Sns2"); stamp(p, cfg, 7); p.label("L_Sns2")
            p.s_cmp("eq", sK, 0); p.branch("scc0", "L_Sns3"); stamp(p, cfg, 5); p.label("L_Sns3")
            p.s_cmp("eq", sK, 10); p.branch("scc0", "L_Sns4"); stamp(p, cfg, 9); p.label("L_Sns4")
        if cfg.prio_s: p.setprio(cfg.prio_s)
        gen_S_phase(p, cfg)
        p.s_add(sK, sK, 1)
        p.wait(lgkm=0)
        if cfg.stamps:
            p.s_cmp("eq", sK, 4); p.branch("scc0", "L_Sns"); stamp(p, cfg, 8); p.label("L_Sns")
        p.s_cmp("lt", sK, sNR); p.branch("scc1", "L_Sloop")
        if cfg.stamps:
            stamp(p, cfg, 10); p.wait(vm=0); stamp(p, cfg, 11)
        p.label("L_end")
        p.endpgm()
    blk("S loop", sloop)
    items = []
    for b in blocks: items += b
    items, nn = insert_nops(items)
    return items

HEADER = open("standalone__video_video_swin__vision.s.ref").read().split("; Override launch")[0] if __name__ == "__main__" else ""
NAME = "standalone__video_video_swin__vision_kernel"
def to_asm(items, cfg, header=""):
    from hwrun import wrap
    return header + wrap(NAME, emit(items), cfg.nwg, 512, LDS_BYTES, 256, 96)

if __name__ == "__main__":
    kw = {}
    out = sys.argv[1]
    for a in sys.argv[2:]:
        k, v = a.split("=")
        try: v = eval(v)
        except Exception: pass
        kw[k] = v
    cfg = Cfg(**kw)
    items = gen_kernel(cfg, verbose=True)
    open(out, "w").write(to_asm(items, cfg, HEADER))
    print("instructions:", len(items))
```
